```python
import torch

def _softmax(x, axis=-1):
    return torch.softmax(x, dim=axis)
def _gelu(x):
    return torch.nn.functional.gelu(x, approximate="tanh")
def _silu(x):
    return torch.nn.functional.silu(x)
def _sigmoid(x):
    return torch.sigmoid(x)
def _layernorm(x, axis=-1, eps=1e-5):
    m = x.mean(dim=axis, keepdim=True)
    v = x.var(dim=axis, keepdim=True, unbiased=False)
    return (x - m) / torch.sqrt(v + eps)
def _scatter_add(tgt, idx, src, axis=0):
    return tgt.clone().index_add_(axis, idx, src)
def _segment_sum(src, seg, n):
    out = torch.zeros((n,) + src.shape[1:], dtype=src.dtype)
    return out.index_add_(0, seg, src)
def _pad(x, pw):
    flat = tuple(v for pair in reversed(pw) for v in pair)
    return torch.nn.functional.pad(x, flat)

kernel_name = 'standalone__mha_block_cached__near_ridge'

def setup_inputs():

    _w = (lambda a: (lambda t: t.to(torch.bfloat16) if t.is_floating_point() else t)(torch.as_tensor(a)))
    B, Sq, D = 16, 112, 512
    H, Sk, Dh = 32, 512, 128
    return {
        "x": _w((lambda *s: torch.randn(*s, dtype=torch.bfloat16) * 0.8)(B, Sq, D)),
        "k_cache": _w((lambda *s: torch.randn(*s, dtype=torch.bfloat16) * 0.8)(B, H, Sk, Dh)),
        "v_cache": _w((lambda *s: torch.randn(*s, dtype=torch.bfloat16) * 0.05)(B, H, Sk, Dh)),
        "wq": _w((lambda *s: torch.randn(*s, dtype=torch.bfloat16) * 0.8)(D, H * Dh) * (D ** -0.5)),
        "wo": _w((lambda *s: torch.randn(*s, dtype=torch.bfloat16) * 0.05)(H * Dh, D) * ((H * Dh) ** -0.5)),
    }

def reference(x, k_cache, v_cache, wq, wo):
    B, Sq, D = x.shape
    H, Dh = 32, 128
    q = (lambda x, *d: x.permute(*d))((x @ wq).reshape(B, Sq, H, Dh), 0, 2, 1, 3)
    scores = torch.einsum("bhqd,bhkd->bhqk", q, k_cache) * (Dh ** -0.5)
    p = _softmax(scores, axis=-1)
    o = torch.einsum("bhqk,bhkd->bhqd", p, v_cache)
    return (lambda x, *d: x.permute(*d))(o, 0, 2, 1, 3).reshape(B, Sq, H * Dh) @ wo
```

```python
KNAME = "standalone__mha_block_cached__near_ridge_kernel"

class Asm:
    def __init__(self):
        self.lines = []
    def __call__(self, s=""):
        for l in s.split("\n"):
            self.lines.append(l)
    def label(self, n):
        self.lines.append(n + ":")
    def text(self):
        return "\n".join(self.lines) + "\n"

def header(launch_lines):
    return "\n".join(launch_lines) + '\n.amdgcn_target "amdgcn-amd-amdhsa--gfx950"\n.text\n'

def kstart(name):
    return f".globl {name}\n.p2align 8\n.type {name},@function\n{name}:\n"

def kdesc(name, vgpr=256, sgpr=102, accum=256, extra=""):
    return f""".amdhsa_kernel {name}
  .amdhsa_next_free_vgpr {vgpr}
  .amdhsa_next_free_sgpr {sgpr}
  .amdhsa_accum_offset {accum}
  .amdhsa_group_segment_fixed_size 0
  .amdhsa_kernarg_size 64
  .amdhsa_user_sgpr_count 2
  .amdhsa_user_sgpr_kernarg_segment_ptr 1
  .amdhsa_system_sgpr_workgroup_id_x 1
{extra}.end_amdhsa_kernel
"""
RODATA = '.section .rodata,"a"\n.p2align 6\n'
```

```python
import re

_reg = re.compile(r"^(-|abs\()?([vas])(\d+)\)?$")
_rng = re.compile(r"^([vas])\[(\d+):(\d+)\]$")


def regs_of(op):
    op = op.strip()
    m = _reg.match(op)
    if m:
        return [m.group(2) + m.group(3)]
    m = _rng.match(op)
    if m:
        return [m.group(1) + str(i) for i in range(int(m.group(2)), int(m.group(3)) + 1)]
    if op in ("vcc", "m0", "exec"):
        return [op]
    if op in ("vcc_lo", "vcc_hi"):
        return ["vcc"]
    return []


TRANS = ("v_exp_f32", "v_rcp_f32", "v_log_f32", "v_rsq_f32", "v_sqrt_f32")


class I:
    __slots__ = ("t", "k", "r", "w", "c", "op", "tag", "ready", "meta")

    def __init__(self, text, tag=None, ready=-1, meta=None):
        self.t = text.strip()
        self.tag = tag
        self.ready = ready
        self.meta = meta
        t = self.t.split(";")[0].strip()
        self.c = []
        if not t or t.endswith(":") or t.startswith("."):
            self.k, self.r, self.w, self.op = "label", [], [], ""
            return
        p = t.split(None, 1)
        op = p[0]
        self.op = op
        ops = []
        if len(p) > 1:
            ops = [o.strip() for o in p[1].split(",")]
            last = ops[-1].split()
            mods = last[1:]
            ops[-1] = last[0]
        else:
            mods = []
        R = lambda lst: [x for o in lst for x in regs_of(o)]
        if op.startswith("v_mfma"):
            self.k, self.w, self.r, self.c = "mfma", R(ops[:1]), R(ops[1:3]), R(ops[3:4])
        elif op.startswith("ds_read"):
            self.k, self.w, self.r = "ds", R(ops[:1]), R(ops[1:])
        elif op.startswith("ds_write"):
            self.k, self.w, self.r = "ds", [], R(ops)
        elif op.startswith("buffer_load") or op.startswith("global_load"):
            if "lds" in mods:
                self.k, self.w, self.r = "dma", [], R(ops) + ["m0"]
            else:
                self.k, self.w, self.r = "vload", R(ops[:1]), R(ops[1:])
        elif op.startswith("buffer_store") or op.startswith("global_store") or op.startswith("buffer_atomic"):
            self.k, self.w, self.r = "vstore", [], R(ops)
        elif op.startswith("buffer_wbl2") or op.startswith("buffer_inv"):
            self.k, self.w, self.r = "vstore", [], []
        elif op.startswith("v_permlane"):
            self.k, self.w, self.r = "perm", R(ops), R(ops)
        elif op.startswith("v_readfirstlane") or op.startswith("v_readlane"):
            self.k, self.w, self.r = "rdlane", R(ops[:1]), R(ops[1:])
        elif op.startswith("v_"):
            self.k = "trans" if op.split("_e")[0] in TRANS or op in TRANS else "valu"
            self.w, self.r = R(ops[:1]), R(ops[1:])
            if op.startswith("v_fmac"):
                self.r = self.r + self.w
        elif op in ("s_waitcnt", "s_barrier", "s_nop", "s_endpgm", "s_sleep", "s_setprio") or op.startswith("s_cbranch") or op == "s_branch":
            self.k, self.w, self.r = "ctl", [], []
        elif op.startswith("s_cmp") or op.startswith("s_bitcmp") or op == "s_setpc_b64":
            self.k, self.w, self.r = "salu", [], R(ops)
        elif op.startswith("s_"):
            self.k, self.w, self.r = "salu", R(ops[:1]), R(ops[1:])
        else:
            raise ValueError("unknown instruction: " + t)

    def states(self):
        if self.k == "label":
            return 0
        if self.op == "s_nop":
            return int(self.t.split()[1]) + 1
        return 1

    def is_valu(self):
        return self.k in ("valu", "trans", "perm", "rdlane")

    def slots(self):
        if self.k in ("trans", "dma", "vload", "vstore"):
            return 2
        return 1


def need_states(p, c):
    n = 0
    pw, pr = set(p.w), set(p.r)
    cr, cw, cc = set(c.r), set(c.w), set(c.c)
    if p.is_valu():
        vw = {x for x in pw if x[0] in "va" and x != "vcc"}
        sw = pw - vw
        if c.k == "mfma" and vw & (cr | cc):
            n = max(n, 2)
        if c.k == "perm" and vw & cr:
            n = max(n, 2)
        if c.k == "rdlane" and vw & cr:
            n = max(n, 1)
        if p.k == "trans" and c.is_valu() and c.k != "trans" and vw & cr:
            n = max(n, 1)
        if sw and c.k in ("dma", "vload", "vstore") and sw & cr:
            n = max(n, 5)
        if sw and c.is_valu() and sw & cr:
            n = max(n, 2)
        if sw and c.k == "salu" and sw & cr:
            n = max(n, 1)
        if "exec" in pw and c.k == "mfma":
            n = max(n, 4)
    if p.k == "mfma":
        passes = 8 if "32x32" in p.op else 4
        big = passes + 4
        if c.k == "mfma":
            if pw & cr:
                n = max(n, big)
            if pw & cc and list(p.w) != list(c.c):
                n = max(n, big - 2)
        elif c.is_valu():
            if pw & (cr | cw):
                n = max(n, big)
            if set(p.c) & cw:
                n = max(n, passes - 1)
        elif c.k in ("ds", "dma", "vload", "vstore"):
            if pw & (cr | cw):
                n = max(n, big)
    if p.k == "salu" and "m0" in pw and c.k == "dma":
        n = max(n, 1)
    if p.k == "vstore" and ("x4" in p.op or "x3" in p.op):
        data = set(p.r[:4])
        if c.is_valu() and data & cw:
            n = max(n, 2)
        elif data & cw:
            n = max(n, 1)
    return n


def pad_hazards(seq, window=24):
    out = []
    added = 0
    for c in seq:
        if c.k != "label" and c.op != "s_nop":
            dist = 0
            need = 0
            for p in reversed(out[-window:]):
                k = need_states(p, c)
                if k > dist:
                    need = max(need, k - dist)
                dist += p.states()
                if dist >= 20:
                    break
            while need > 0:
                n = min(need, 8)
                out.append(I(f"s_nop {n-1}"))
                added += n
                need -= n
        out.append(c)
    return out, added


class Item:
    __slots__ = ("ins", "needs", "post", "step")

    def __init__(self, text, step):
        self.ins = I(text)
        self.needs = []
        self.post = []
        self.step = step


class Stream:
    def __init__(self):
        self.out = []
        self.dsq = []
        self.vmq = []
        self.cyc = 0

    def emit(self, ins):
        if isinstance(ins, str):
            for l in ins.split("\n"):
                if l.strip() and not l.strip().startswith(";"):
                    self.emit(I(l))
            return
        if ins.k == "ds":
            self.dsq.append(set(ins.w))
        elif ins.k in ("dma", "vload", "vstore"):
            self.vmq.append(ins.meta)
        self.out.append(ins)

    def lgkm_for(self, regs):
        regs = set(regs)
        last = -1
        for i, d in enumerate(self.dsq):
            if d & regs:
                last = i
        if last < 0:
            return None
        n = len(self.dsq) - 1 - last
        n = min(n, 15)
        self.dsq = self.dsq[len(self.dsq) - n:] if n else []
        return n

    def lgkm_all(self):
        self.dsq = []
        self.emit("s_waitcnt lgkmcnt(0)")

    def vm_for(self, tags):
        last = -1
        for i, t in enumerate(self.vmq):
            if t in tags:
                last = i
        if last < 0:
            return None
        n = len(self.vmq) - 1 - last
        n = min(n, 63)
        self.vmq = self.vmq[len(self.vmq) - n:] if n else []
        return n
```

```python
import sys
import math
import struct
from asmlib import *
from sched import *

NSLOT = 10
MF = "v_mfma_f32_16x16x32_bf16"

SRD_X, SRD_K, SRD_V, SRD_WQ, SRD_WO, SRD_WS, SRD_OUT = 4, 8, 12, 16, 20, 24, 28
S_WAVE, S_WB, S_X, S_KV, S_WQ, S_WO, S_ST, S_T0, S_T1, S_SC, S_THR = 32, 33, 34, 35, 36, 37, 38, 39, 40, 41, 42
S_RET = 44
S_B, S_P = 46, 47
S_TS = 48
S_KA = 64

V_T = 1
V_L16 = 16
V_RC = 17
V_MX = 19
V_AT = 20
V_AK = 44
V_OK = 56
V_OV = 60
V_OW = 62
V_L = 68
V_NM = 76
V_S = [84, 116]
V_Q = 148
V_ACC = 180
V_TMP = 244
V_AX = V_Q
V_OX = V_Q + 12

A_X = 0
A_OB = 0
A_OACC = 128
A_FR = 192
NFR = 8
A_ONE = 224

PART_OFF = 0x1000000


def v(n, k=4): return f"v[{n}:{n+k-1}]"
def a(n, k=4): return f"a[{n}:{n+k-1}]"
def srd(n): return f"s[{n}:{n+3}]"
def fbits(x): return "0x%08x" % struct.unpack("<I", struct.pack("<f", x))[0]


class Cfg:
    nt_kv = "nt"
    nt_w = ""
    nt_x = ""
    st = "sc1"
    lead2 = 9
    lead1 = 5
    prof = False
    prefetch_code = True
    thr = 10.0

    def __init__(self, **kw):
        for k, x in kw.items():
            assert hasattr(self, k), k
            setattr(self, k, x)


def build_stream(nt, cfg, name):
    st = Stream()
    items, pairs, steps, tiles = [], [], [], []
    fq, lq = [], []
    frag_last = [-1] * NFR
    fr = [0]
    QT = range(nt)
    tramps = []
    nts = [0]

    def stamp():
        if not cfg.prof:
            return []
        k = nts[0]
        nts[0] += 1
        assert k < 16
        return [I("s_memrealtime s[80:81]"), I("s_waitcnt lgkmcnt(0)", meta="lgkm0"), I(f"s_mov_b32 s{S_TS+k}, s80")]

    def new_tile(kind, *args):
        tiles.append((kind, args))
        return len(tiles) - 1

    def lds(t):
        sb = (t % NSLOT) * 16384
        return sb >> 16, sb & 0xFFFF

    def new_step(tl):
        steps.append(dict(tiles=tl, first=len(items)))
        return len(steps) - 1

    def alloc_frag():
        f = fr[0] % NFR
        fr[0] += 1
        return f

    def tstep(tl, wt, acc, accf, B, first, lsum=None):
        s = new_step(tl)
        w, base = lds(wt)
        marks = {}
        for ks in range(2):
            marks[ks] = len(items)
            if lsum is not None:
                for qt in QT:
                    c = "0" if (lsum and ks == 0) else v(V_L + 4*qt)
                    items.append(Item(f"{MF} {v(V_L+4*qt)}, {a(A_ONE)}, {B(ks, qt)}, {c}", s))
            for mt in range(8):
                f = alloc_frag()
                r = A_FR + 4*f
                rd = [I(f"ds_read_b64_tr_b16 {a(r+2*u, 2)}, v{V_AT+8*w+mt} offset:{base+8192*ks+4096*u}") for u in range(2)]
                pairs.append(dict(ins=rd, use=len(items), step=s, war=frag_last[f]))
                for qt in QT:
                    d = accf(acc(mt, qt))
                    c = "0" if (first and ks == 0) else d
                    items.append(Item(f"{MF} {d}, {a(r)}, {B(ks, qt)}, {c}", s))
                frag_last[f] = len(items) - 1
                marks[(ks, mt)] = len(items) - 1
        marks["end"] = len(items) - 1
        return marks

    def sacc(buf, mt, qt): return V_S[buf] + 8*mt + 4*qt

    def sstep(t, Q, czero):
        h, j = t >> 3, t & 7
        kt = new_tile("K", h, j)
        s = new_step([kt])
        w, base = lds(kt)
        buf = t & 1
        first = len(items)
        for mt in range(4):
            for kp in range(2):
                fs = [alloc_frag(), alloc_frag()]
                rd = [I(f"ds_read_b128 {a(A_FR+4*fs[u])}, v{V_AK+4*w+2*kp+u} offset:{base+4096*mt}") for u in range(2)]
                pairs.append(dict(ins=rd, use=len(items), step=s, war=max(frag_last[fs[0]], frag_last[fs[1]])))
                for u in range(2):
                    ks = 2*kp + u
                    for qt in QT:
                        d = v(sacc(buf, mt, qt))
                        c = d if ks else ("0" if czero else v(V_NM + 4*qt))
                        items.append(Item(f"{MF} {d}, {a(A_FR+4*fs[u])}, {v(Q(ks, qt))}, {c}", s))
                    frag_last[fs[u]] = len(items) - 1
        return first, len(items) - 1

    def xreg(j, ks, qt): return A_X + ((2*j + ks)*2 + qt)*4

    def qa_acc(mt, qt): return V_S[0] + 8*mt + 4*qt
    def qb_acc(mt, qt): return V_ACC + 8*mt + 4*qt
    def QA(ks, qt): return V_Q + 8*ks + 4*qt
    def QB(ks, qt): return qb_acc(2*ks, qt)
    def oa_acc(mt, qt): return A_OACC + 8*mt + 4*qt
    def ob_acc(mt, qt):
        return qb_acc(mt, qt) if mt & 1 else V_Q + 8*(mt >> 1) + 4*qt
    def OA(kk, qt): return A_OB + 8*kk + 4*qt
    def OB(kk, qt): return V_S[1] + 8*kk + 4*qt
    def out_acc(nq):
        if nq & 1:
            return ob_acc
        return lambda mt, qt: (V_S[0] + 8*(mt >> 1) + 4*qt) if mt & 1 else qb_acc(mt, qt)

    def qstep(h, j):
        tl = []
        if h == 0:
            xt = new_tile("X", j)
            tl.append(xt)
        wt = new_tile("W", h, j)
        tl.append(wt)
        n0 = len(pairs)
        m = tstep(tl, wt, qa_acc if h == 0 else qb_acc, v, lambda ks, qt: a(xreg(j, ks, qt)), j == 0)
        if h == 0:
            w, base = lds(xt)
            xp = []
            for ks in range(2):
                for qt in QT:
                    rd = [I(f"ds_read_b64 {a(xreg(j, ks, qt)+2*u, 2)}, v{V_AX+4*w+2*ks+u} offset:{base+2048*qt}") for u in range(2)]
                    xp.append(dict(ins=rd, use=m[ks], step=len(steps)-1, war=-1))
            pairs[n0:] = sorted(xp + pairs[n0:], key=lambda p: p["use"])
        return m

    def F(q, text, tag, ready, meta=None):
        q.append(I(text, tag=tag, ready=ready, meta=meta))

    def qcvt(q, acc, dst, tag, m):
        for ks in range(4):
            rdy = m[(1, 2*ks+1)] + 3
            for qt in QT:
                x, y, d = acc(2*ks, qt), acc(2*ks+1, qt), dst(ks, qt)
                for r in range(4):
                    F(q, f"v_mul_f32 v{x+r}, s{S_SC}, v{x+r}", tag, rdy)
                for r in range(4):
                    F(q, f"v_mul_f32 v{y+r}, s{S_SC}, v{y+r}", tag, rdy)
                F(q, f"v_cvt_pk_bf16_f32 v{d}, v{x}, v{x+1}", tag, rdy)
                F(q, f"v_cvt_pk_bf16_f32 v{d+1}, v{x+2}, v{x+3}", tag, rdy)
                F(q, f"v_cvt_pk_bf16_f32 v{d+2}, v{y}, v{y+1}", tag, rdy)
                F(q, f"v_cvt_pk_bf16_f32 v{d+3}, v{y+2}, v{y+3}", tag, rdy)
            for qt in QT:
                d = dst(ks, qt)
                F(q, f"v_permlane32_swap_b32 v{d}, v{d+2}", tag, rdy)
                F(q, f"v_permlane32_swap_b32 v{d+1}, v{d+3}", tag, rdy)
            for qt in QT:
                d = dst(ks, qt)
                F(q, f"v_permlane16_swap_b32 v{d}, v{d+2}", tag, rdy)
                F(q, f"v_permlane16_swap_b32 v{d+1}, v{d+3}", tag, rdy)

    def maxchain(dst, regs):
        o = [f"v_max3_f32 v{dst}, v{regs[0]}, v{regs[1]}, v{regs[2]}"]
        i = 3
        while i + 1 < len(regs):
            o.append(f"v_max3_f32 v{dst}, v{dst}, v{regs[i]}, v{regs[i+1]}")
            i += 2
        if i < len(regs):
            o.append(f"v_max_f32 v{dst}, v{dst}, v{regs[i]}")
        return o

    def rowmax(buf):
        o = []
        ch = [maxchain(V_T + 2*qt, [sacc(buf, mt, qt) + r for mt in range(4) for r in range(4)]) for qt in QT]
        for z in zip(*ch):
            o += list(z)
        for op in ("v_permlane32_swap_b32", "v_permlane16_swap_b32"):
            o += [f"v_mov_b32 v{V_T+2*qt+1}, v{V_T+2*qt}" for qt in QT]
            o += [f"{op} v{V_T+2*qt}, v{V_T+2*qt+1}" for qt in QT]
            o += [f"v_max_f32 v{V_T+2*qt}, v{V_T+2*qt}, v{V_T+2*qt+1}" for qt in QT]
        return o

    def initmax(t, rdy):
        buf = t & 1
        tag = ("chk", t)
        for x in rowmax(buf):
            F(fq, x, tag, rdy)
        for qt in QT:
            for r in range(4):
                F(fq, f"v_sub_f32 v{V_NM+4*qt+r}, 0, v{V_T+2*qt}", tag, rdy)
        for mt in range(4):
            for qt in QT:
                for r in range(4):
                    x = sacc(buf, mt, qt) + r
                    F(fq, f"v_sub_f32 v{x}, v{x}, v{V_T+2*qt}", ("sub", t), rdy)

    def expcvt(t, rdy):
        buf = t & 1
        for ks in range(2):
            for qt in QT:
                x, y = sacc(buf, 2*ks, qt), sacc(buf, 2*ks+1, qt)
                tag = ("P", t, ks)
                for r in range(4):
                    F(fq, f"v_exp_f32 v{x+r}, v{x+r}", tag, rdy)
                for r in range(4):
                    F(fq, f"v_exp_f32 v{y+r}, v{y+r}", tag, rdy)
                F(fq, f"v_cvt_pk_bf16_f32 v{x}, v{x}, v{x+1}", tag, rdy)
                F(fq, f"v_cvt_pk_bf16_f32 v{x+1}, v{x+2}, v{x+3}", tag, rdy)
                F(fq, f"v_cvt_pk_bf16_f32 v{x+2}, v{y}, v{y+1}", tag, rdy)
                F(fq, f"v_cvt_pk_bf16_f32 v{x+3}, v{y+2}, v{y+3}", tag, rdy)

    for j in range(8):
        m = qstep(0, j)
    items[-1].post += stamp()
    qcvt(fq, qa_acc, QA, "qA", m)
    qstep(1, 0)
    f0, l0 = sstep(0, QA, True)
    items[f0].needs.append("qA")
    initmax(0, l0 + 3)
    qstep(1, 1)
    for t in range(16):
        h = t >> 3
        start = len(items)
        if t == 8:
            for qt in QT:
                F(lq, f"v_rcp_f32 v{V_RC+qt}, v{V_L+4*qt}", "rcpA", start + 2)
        expcvt(t, start - 1)
        if t == 8:
            for kk in range(4):
                for qt in QT:
                    for e in range(8):
                        F(lq, f"v_accvgpr_read_b32 v{V_TMP+e}, a{oa_acc(2*kk+(e>>2), qt)+(e&3)}", "OA", start + 8)
                    for e in range(8):
                        F(lq, f"v_mul_f32 v{V_TMP+e}, v{V_RC+qt}, v{V_TMP+e}", "OA", start + 8)
                    for e in range(4):
                        F(lq, f"v_cvt_pk_bf16_f32 v{V_TMP+e}, v{V_TMP+2*e}, v{V_TMP+2*e+1}", "OA", start + 8)
                    for e in range(4):
                        F(lq, f"v_accvgpr_write_b32 a{OA(kk, qt)+e}, v{V_TMP+e}", "OA", start + 8)
        if t + 1 < 16:
            f1, l1 = sstep(t + 1, QA if t + 1 < 8 else QB, t + 1 == 8)
            items[f1].needs.append(("chk", t))
            if t + 1 == 8:
                items[f1].needs.append("qB")
                initmax(8, l1 + 3)
            else:
                b1 = (t + 1) & 1
                for x in maxchain(V_MX, [sacc(b1, mt, qt) + r for mt in range(4) for qt in QT for r in range(4)]):
                    F(fq, x, ("mx", t + 1), l1 + 3)
                F(fq, f"v_cmp_lt_f32 vcc, s{S_THR}, v{V_MX}", ("mx", t + 1), l1 + 3)
        if t + 2 <= 7:
            m = qstep(1, t + 2)
            if t + 2 == 7:
                qcvt(lq, qb_acc, QB, "qB", m)
        vt = new_tile("V", h, t & 7)
        buf = t & 1
        m = tstep([vt], vt, oa_acc if h == 0 else ob_acc, a if h == 0 else v,
                  lambda ks, qt: v(sacc(buf, 2*ks, qt)), (t & 7) == 0, lsum=((t & 7) == 0))
        items[m[0]].needs.append(("P", t, 0))
        items[m[1]].needs.append(("P", t, 1))
        if t == 8:
            items[m[0]].needs.append("rcpA")
        if t + 1 < 16 and t + 1 != 8:
            lab = f"{name}_t{t+1}"
            items[m["end"]].post += [("flush", ("mx", t + 1)), I(f"s_cbranch_vccnz {lab}_slow"), I(f"{lab}_back:")]
            tramps.append((lab, (t + 1) & 1, h))
        if t in (3, 7, 11, 15):
            items[m["end"]].post += stamp()
    rdy = len(items) + 2
    for qt in QT:
        F(fq, f"v_rcp_f32 v{V_RC+qt}, v{V_L+4*qt}", "OB", rdy)
    for kk in range(4):
        for qt in QT:
            x, y, d = ob_acc(2*kk, qt), ob_acc(2*kk+1, qt), OB(kk, qt)
            tag = ("OB", kk)
            for r in range(4):
                F(fq, f"v_mul_f32 v{x+r}, v{V_RC+qt}, v{x+r}", tag, rdy)
            for r in range(4):
                F(fq, f"v_mul_f32 v{y+r}, v{V_RC+qt}, v{y+r}", tag, rdy)
            F(fq, f"v_cvt_pk_bf16_f32 v{d}, v{x}, v{x+1}", tag, rdy)
            F(fq, f"v_cvt_pk_bf16_f32 v{d+1}, v{x+2}, v{x+3}", tag, rdy)
            F(fq, f"v_cvt_pk_bf16_f32 v{d+2}, v{y}, v{y+1}", tag, rdy)
            F(fq, f"v_cvt_pk_bf16_f32 v{d+3}, v{y+2}, v{y+3}", tag, rdy)
    first_u = len(items)
    for nq in range(4):
        acc = out_acc(nq)
        for kq in range(4):
            ut = new_tile("U", nq, kq)
            if kq < 2:
                B = lambda ks, qt: a(OA(2*kq + ks, qt))
            else:
                B = lambda ks, qt: v(OB(2*(kq-2) + ks, qt))
            m = tstep([ut], ut, acc, v, B, kq == 0)
            if nq == 0 and kq >= 2:
                items[m[0]].needs.append(("OB", 2*(kq-2)))
                items[m[1]].needs.append(("OB", 2*(kq-2)+1))
            if kq == 0 and nq >= 2:
                items[m[0]].needs.append(("st", nq - 2))
        for tt in range(4):
            rdy = m[(1, 2*tt+1)] + 3
            for qt in QT:
                x, y = acc(2*tt, qt), acc(2*tt+1, qt)
                tag = ("st", nq)
                F(fq, f"v_cvt_pk_bf16_f32 v{x}, v{x}, v{x+1}", tag, rdy)
                F(fq, f"v_cvt_pk_bf16_f32 v{x+1}, v{x+2}, v{x+3}", tag, rdy)
                F(fq, f"v_cvt_pk_bf16_f32 v{x+2}, v{y}, v{y+1}", tag, rdy)
                F(fq, f"v_cvt_pk_bf16_f32 v{x+3}, v{y+2}, v{y+3}", tag, rdy)
                F(fq, f"s_add_u32 s{S_T1}, s{S_ST}, {(qt*16 + nq*4 + tt)*16384}", tag, rdy)
                F(fq, f"buffer_store_dwordx4 {v(x)}, v{V_L16}, {srd(SRD_WS)}, s{S_T1} offen {cfg.st}", tag, rdy, meta="store")
    items[first_u].needs.append("OA")
    items[first_u - 1].needs.append("OA")

    wo_setup_done = [False]

    def dma_group(t):
        kind, args = tiles[t]
        o = []
        if kind == "U" and not wo_setup_done[0]:
            wo_setup_done[0] = True
            for j in range(4):
                o.append(I(f"v_and_b32 v{V_T+8}, 0x300, v{V_OV+(j&1)}"))
                o.append(I(f"v_mul_u32_u24 v{V_T+8}, 3, v{V_T+8}"))
                o.append(I(f"v_add3_u32 v{V_OW+j}, v{V_T+8}, v{V_OV+(j&1)}, s{S_T0}", meta=("pre", 3072*j)))
        o2 = []
        for x in o:
            if x.meta:
                o2.append(I(f"s_mov_b32 s{S_T0}, {x.meta[1]}"))
                x.meta = None
            o2.append(x)
        o = o2
        o.append(I(f"s_add_u32 m0, s{S_WB}, {(t % NSLOT)*16384}"))
        if kind == "X":
            base, off, r, vo, n, fl = S_X, 128*args[0], SRD_X, [V_OX+j for j in range(4)], 2*nt, cfg.nt_x
        elif kind == "W":
            base, off, r, vo, n, fl = S_WQ, 64*8192*args[1] + 256*args[0], SRD_WQ, [V_OW+j for j in range(4)], 4, cfg.nt_w
        elif kind == "K":
            base, off, r, vo, n, fl = S_KV, 131072*args[0] + 16384*args[1], SRD_K, [V_OK+j for j in range(4)], 4, cfg.nt_kv
        elif kind == "V":
            base, off, r, vo, n, fl = S_KV, 131072*args[0] + 16384*args[1], SRD_V, [V_OV+(j & 1) for j in range(4)], 4, cfg.nt_kv
        elif kind == "U":
            base, off, r, vo, n, fl = S_WO, 65536*args[1] + 256*args[0], SRD_WO, [V_OW+j for j in range(4)], 4, cfg.nt_w
        o.append(I(f"s_add_u32 s{S_T0}, s{base}, {off}"))
        for j in range(n):
            o.append(I(f"buffer_load_dwordx4 v{vo[j]}, {srd(r)}, s{S_T0} offen offset:{1024*j} {fl} lds", meta=t))
        return o

    lead = cfg.lead2 if nt == 2 else cfg.lead1
    budget0 = 2 if nt == 2 else 6
    dq = []
    next_tile = [0]
    barrier_done = [-1]
    est = [0]

    def release(upto):
        while next_tile[0] < len(tiles) and next_tile[0] - NSLOT <= upto:
            dq.extend(dma_group(next_tile[0]))
            next_tile[0] += 1

    def barrier(s):
        last = max(steps[s]["tiles"])
        while any(x.meta is not None and x.meta <= last for x in dq if x.k == "dma"):
            st.emit(dq.pop(0))
            est[0] += 8
        n = st.vm_for(set(steps[s]["tiles"]))
        if n is not None:
            st.emit(f"s_waitcnt vmcnt({n})")
        st.emit("s_barrier")
        est[0] += 20
        barrier_done[0] = s
        if s >= 2:
            release(max(steps[s-2]["tiles"]))

    def emit_pair():
        p = pairs.pop(0)
        if p["step"] > barrier_done[0]:
            assert p["step"] == barrier_done[0] + 1
            barrier(p["step"])
        for x in p["ins"]:
            st.emit(x)

    def flush(tag):
        n = 0
        for q in (fq, lq):
            last = -1
            for i, x in enumerate(q):
                if x.tag == tag:
                    last = i
            for _ in range(last + 1):
                x = q.pop(0)
                n += x.slots()
                st.emit(x)
        return n

    release(-1)
    while dq:
        st.emit(dq.pop(0))
    st.emit(setup_late(nt))
    for x in stamp():
        st.emit(x)
    while pairs and pairs[0]["use"] - lead < 0:
        emit_pair()
    for x in stamp():
        st.emit(x)
        st.dsq = []
    n = st.lgkm_for(items[0].ins.r)
    if n is not None:
        st.emit(f"s_waitcnt lgkmcnt({n})")
    for i, it in enumerate(items):
        st.emit(it.ins)
        used = 0
        scalar_free = True
        nxt = items[i+1] if i + 1 < len(items) else None
        for x in it.post:
            if isinstance(x, tuple):
                used += flush(x[1])
            else:
                st.emit(x)
                if x.meta == "lgkm0":
                    st.dsq = []
            scalar_free = False
        if nxt is not None:
            n = st.lgkm_for(nxt.ins.r)
            if n is not None:
                st.emit(f"s_waitcnt lgkmcnt({n})")
                if not scalar_free:
                    used += 1
                scalar_free = False
        budget = budget0
        if pairs and pairs[0]["use"] - lead <= i and pairs[0]["war"] <= i:
            emit_pair()
            budget -= 2
            used += 2
        while pairs and pairs[0]["use"] <= i + 1:
            assert pairs[0]["war"] <= i
            emit_pair()
            budget -= 2
            used += 2
        if budget > 0 and dq:
            if dq[0].k == "salu":
                x = dq.pop(0)
                st.emit(x)
                if not scalar_free:
                    budget -= 1
                    used += 1
                scalar_free = False
                ok = "m0" not in x.w
            else:
                ok = True
            if ok and dq and dq[0].k == "dma" and budget >= 2:
                st.emit(dq.pop(0))
                budget -= 2
                used += 2
            while dq and dq[0].is_valu() and budget > 0:
                st.emit(dq.pop(0))
                budget -= 1
                used += 1
        while budget > 0:
            q = None
            if fq and fq[0].ready <= i:
                q = fq
            elif lq and lq[0].ready <= i:
                q = lq
            if q is None:
                break
            x = q[0]
            if x.k == "salu" and scalar_free:
                scalar_free = False
                st.emit(q.pop(0))
                continue
            if x.slots() > budget:
                if q is fq and lq and lq[0].ready <= i and lq[0].slots() <= budget:
                    q = lq
                    x = q[0]
                else:
                    break
            if x.k == "vstore" and budget < budget0:
                break
            st.emit(q.pop(0))
            scalar_free = False
            budget -= x.slots()
            used += x.slots()
        if nxt is not None:
            for tag in nxt.needs:
                used += flush(tag)
            n = st.lgkm_for(nxt.ins.r)
            if n is not None:
                st.emit(f"s_waitcnt lgkmcnt({n})")
                used += 1
        est[0] += max(16, 8 + 4*used)
    for q in (fq, lq):
        while q:
            est[0] += 4 * q[0].slots()
            st.emit(q.pop(0))
    assert not pairs and not dq and next_tile[0] == len(tiles)
    for x in stamp():
        st.emit(x)
    if cfg.prof:
        st.emit("s_waitcnt vmcnt(0)")
        for x in stamp():
            st.emit(x)
        st.emit(prof_store(nts[0]))
    st.emit("s_endpgm")

    for lab, buf, h in tramps:
        st.emit(f"{lab}_slow:\ns_call_b64 s[{S_RET}:{S_RET+1}], {name}_resc{buf}{h}\ns_branch {lab}_back")
    for buf in range(2):
        for h in range(2):
            st.emit(f"{name}_resc{buf}{h}:\ns_nop 7\ns_nop 7")
            for x in rowmax(buf):
                st.emit(x)
            for qt in QT:
                d = V_T + 2*qt
                st.emit(f"v_max_f32 v{d}, 0, v{d}")
                for r in range(4):
                    st.emit(f"v_sub_f32 v{V_NM+4*qt+r}, v{V_NM+4*qt+r}, v{d}")
                for mt in range(4):
                    for r in range(4):
                        x = sacc(buf, mt, qt) + r
                        st.emit(f"v_sub_f32 v{x}, v{x}, v{d}")
                st.emit(f"v_exp_f32 v{d+1}, -v{d}")
                for r in range(4):
                    st.emit(f"v_mul_f32 v{V_L+4*qt+r}, v{d+1}, v{V_L+4*qt+r}")
                for mt in range(8):
                    for r in range(4):
                        if h == 0:
                            x = oa_acc(mt, qt) + r
                            st.emit(f"v_accvgpr_read_b32 v{V_T+4}, a{x}\nv_mul_f32 v{V_T+4}, v{d+1}, v{V_T+4}\nv_accvgpr_write_b32 a{x}, v{V_T+4}")
                        else:
                            x = ob_acc(mt, qt) + r
                            st.emit(f"v_mul_f32 v{x}, v{d+1}, v{x}")
            st.emit(f"s_nop 3\ns_setpc_b64 s[{S_RET}:{S_RET+1}]")
    seq, added = pad_hazards(st.out)
    return seq, dict(mfma=len(items), est=est[0], nops=added, n=len(seq), tiles=len(tiles), steps=len(steps))


def setup_early(cfg):
    c = 128 ** -0.5 * math.log2(math.e)
    o = f"""
    s_cmp_ge_u32 s2, 256
    s_cbranch_scc1 k1_end
    s_load_dwordx16 s[{S_KA}:{S_KA+15}], s[0:1], 0
    """
    if cfg.prof:
        o += "s_memrealtime s[82:83]\n"
    o += f"""
    v_lshrrev_b32 v1, 6, v0
    v_and_b32 v0, 63, v0
    v_readfirstlane_b32 s{S_WAVE}, v1
    v_lshlrev_b32 v{V_L16}, 4, v0
    s_and_b32 s3, s2, 7
    s_lshr_b32 s{S_T0}, s2, 3
    s_lshr_b32 s{S_B}, s3, 2
    s_lshl_b32 s{S_B}, s{S_B}, 3
    s_lshr_b32 s{S_T1}, s{S_T0}, 2
    s_add_u32 s{S_B}, s{S_B}, s{S_T1}
    s_and_b32 s{S_P}, s3, 3
    s_lshl_b32 s{S_P}, s{S_P}, 2
    s_and_b32 s{S_T1}, s{S_T0}, 3
    s_add_u32 s{S_P}, s{S_P}, s{S_T1}
    s_lshl_b32 s{S_WB}, s{S_WAVE}, 12
    """
    if cfg.prefetch_code:
        o += f"""
    s_lshl_b32 s{S_T0}, s{S_T0}, 2
    s_add_u32 s{S_T0}, s{S_T0}, s{S_WAVE}
    s_and_b32 s{S_T0}, s{S_T0}, 15
    s_min_u32 s{S_T0}, s{S_T0}, (k1_codeend-k1_pf)/8192-1
    s_lshl_b32 s{S_T0}, s{S_T0}, 13
    v_lshlrev_b32 v2, 7, v0
    v_add_u32 v2, s{S_T0}, v2
    s_getpc_b64 s[84:85]
k1_pf:
    global_load_dword v15, v2, s[84:85]
    """
    o += f"""
    s_mul_i32 s{S_X}, s{S_B}, 114688
    s_lshl_b32 s{S_T0}, s{S_WAVE}, 15
    s_add_u32 s{S_X}, s{S_X}, s{S_T0}
    s_lshl_b32 s{S_KV}, s{S_B}, 22
    s_lshl_b32 s{S_T0}, s{S_P}, 18
    s_add_u32 s{S_KV}, s{S_KV}, s{S_T0}
    s_add_u32 s{S_KV}, s{S_KV}, s{S_WB}
    s_lshl_b32 s{S_WQ}, s{S_WAVE}, 17
    s_lshl_b32 s{S_T0}, s{S_P}, 9
    s_add_u32 s{S_WQ}, s{S_WQ}, s{S_T0}
    s_lshl_b32 s{S_WO}, s{S_P}, 18
    s_lshl_b32 s{S_T0}, s{S_WAVE}, 14
    s_add_u32 s{S_WO}, s{S_WO}, s{S_T0}
    s_mul_i32 s{S_ST}, s{S_B}, {112*16384}
    s_lshl_b32 s{S_T0}, s{S_WAVE}, 19
    s_add_u32 s{S_ST}, s{S_ST}, s{S_T0}
    s_lshl_b32 s{S_T0}, s{S_P}, 10
    s_add_u32 s{S_ST}, s{S_ST}, s{S_T0}
    s_add_u32 s{S_ST}, s{S_ST}, {PART_OFF}
    s_mov_b32 s{S_SC}, {fbits(c)}
    s_mov_b32 s{S_THR}, {fbits(cfg.thr)}
    v_lshrrev_b32 v2, 4, v0
    v_and_b32 v3, 15, v0
    v_lshrrev_b32 v4, 3, v0
    v_and_b32 v5, 7, v0
    """
    for j in range(4):
        o += f"""
    v_add_u32 v6, {4*(j&1)}, v2
    v_xor_b32 v6, v6, v5
    v_lshlrev_b32 v6, 4, v6
    v_lshl_add_u32 v6, v4, 10, v6
    v_add_u32 v{V_OX+j}, {7168*j}, v6
    """
    for j in range(2):
        o += f"""
    v_add_u32 v6, {4*j}, v2
    v_lshlrev_b32 v6, 1, v6
    v_xor_b32 v6, v6, v3
    v_lshlrev_b32 v{7+j}, 4, v6
    v_lshl_add_u32 v{V_OV+j}, v2, 8, v{7+j}
    """
    for j in range(4):
        o += f"""
    v_lshl_add_u32 v6, v2, 13, v{7+(j&1)}
    v_add_u32 v{V_OW+j}, {(32768-1024)*j}, v6
    """
    for j in range(4):
        o += f"""
    v_add_u32 v6, {4*j}, v2
    v_xor_b32 v6, v6, v3
    v_lshlrev_b32 v6, 4, v6
    v_lshl_add_u32 v{V_OK+j}, v2, 8, v6
    """
    o += "s_waitcnt lgkmcnt(0)\n"
    for r, k, n in ((SRD_X, 0, 1835008), (SRD_WQ, 3, 4194304), (SRD_K, 1, 67108864), (SRD_V, 2, 67108864),
                    (SRD_WO, 4, 4194304), (SRD_WS, 7, 268435456)):
        o += f"""
    s_mov_b32 s{r}, s{S_KA+2*k}
    s_mov_b32 s{r+1}, s{S_KA+2*k+1}
    s_mov_b32 s{r+2}, {n}
    s_mov_b32 s{r+3}, 0x20000
    """
    o += f"""
    s_cmp_eq_u32 s{S_WAVE}, 3
    s_cbranch_scc1 k1_w3
    """
    return o


def setup_late(nt):
    o = """
    v_lshrrev_b32 v4, 2, v0
    v_and_b32 v5, 7, v4
    v_lshlrev_b32 v5, 5, v5
    v_lshl_add_u32 v5, v4, 8, v5
    v_and_b32 v6, 3, v0
    v_lshl_add_u32 v5, v6, 3, v5
    """
    for mt in range(8):
        o += f"v_xor_b32 v{V_AT+mt}, {32*mt}, v5\n"
    for w in (1, 2):
        for mt in range(8):
            o += f"v_add_u32 v{V_AT+8*w+mt}, {65536*w}, v{V_AT+mt}\n"
    o += """
    v_xor_b32 v5, v2, v3
    v_lshlrev_b32 v5, 4, v5
    v_lshl_add_u32 v5, v3, 8, v5
    """
    for ks in range(4):
        o += f"v_xor_b32 v{V_AK+ks}, {64*ks}, v5\n"
    for w in (1, 2):
        for ks in range(4):
            o += f"v_add_u32 v{V_AK+4*w+ks}, {65536*w}, v{V_AK+ks}\n"
    o += f"""
    v_lshrrev_b32 v4, 1, v2
    v_lshrrev_b32 v5, 1, v3
    v_xor_b32 v4, v4, v5
    v_lshlrev_b32 v4, 4, v4
    v_lshl_add_u32 v4, v3, 7, v4
    v_and_b32 v5, 1, v2
    v_lshl_add_u32 v4, v5, 3, v4
    v_add_u32 v4, s{S_WB}, v4
    """
    for k in range(4):
        o += f"v_xor_b32 v{V_AX+k}, {32*k}, v4\n"
    for w in (1, 2):
        for k in range(4):
            o += f"v_add_u32 v{V_AX+4*w+k}, {65536*w}, v{V_AX+k}\n"
    o += "v_mov_b32 v4, 0x3f803f80\n"
    for r in range(4):
        o += f"v_accvgpr_write_b32 a{A_ONE+r}, v4\n"
    return o


def prof_store(n):
    o = f"""
    s_lshl_b32 s80, s2, 2
    s_add_u32 s80, s80, s{S_WAVE}
    s_lshl_b32 s80, s80, 7
    v_mov_b32 v1, 0
    s_mov_b64 exec, 1
    v_mov_b32 v2, s82
    buffer_store_dword v2, v1, {srd(SRD_WS)}, s80 offen
    """
    for k in range(n):
        o += f"v_mov_b32 v{3+k}, s{S_TS+k}\nbuffer_store_dword v{3+k}, v1, {srd(SRD_WS)}, s80 offen offset:{4+4*k}\n"
    return o


def reduce_kernel(cfg):
    o = f"""
    s_cmp_ge_u32 s2, 448
    s_cbranch_scc1 k2_end
    s_load_dwordx2 s[4:5], s[0:1], 40
    s_load_dwordx2 s[8:9], s[0:1], 56
    """
    if cfg.prof:
        o += "s_memrealtime s[20:21]\n"
    o += f"""
    v_lshrrev_b32 v1, 6, v0
    v_and_b32 v0, 63, v0
    v_readfirstlane_b32 s12, v1
    v_lshlrev_b32 v2, 4, v0
    s_lshl_b32 s13, s2, 2
    s_add_u32 s13, s13, s12
    s_lshl_b32 s14, s13, 14
    s_add_u32 s14, s14, {PART_OFF}
    s_mov_b32 s6, 1835008
    s_mov_b32 s7, 0x20000
    s_mov_b32 s10, 268435456
    s_mov_b32 s11, 0x20000
    s_waitcnt lgkmcnt(0)
    """
    for p in range(16):
        o += f"buffer_load_dwordx4 {v(16+4*p)}, v2, s[8:11], s14 offen offset:{1024*(p&3)}\n"
        if p & 3 == 3:
            o += "s_add_u32 s14, s14, 4096\n"
    o += """
    s_lshr_b32 s15, s13, 4
    s_lshl_b32 s15, s15, 14
    s_and_b32 s16, s13, 15
    s_lshl_b32 s16, s16, 6
    s_add_u32 s15, s15, s16
    v_and_b32 v3, 15, v0
    v_lshlrev_b32 v3, 10, v3
    v_lshrrev_b32 v4, 4, v0
    v_lshl_add_u32 v3, v4, 4, v3
    """
    for p in range(16):
        o += f"s_waitcnt vmcnt({15-p})\n"
        for r in range(4):
            x = 16 + 4*p + r
            if p == 0:
                o += f"v_lshlrev_b32 v{8+2*r}, 16, v{x}\nv_and_b32 v{9+2*r}, 0xffff0000, v{x}\n"
            else:
                o += f"v_lshlrev_b32 v5, 16, v{x}\nv_and_b32 v6, 0xffff0000, v{x}\nv_add_f32 v{8+2*r}, v{8+2*r}, v5\nv_add_f32 v{9+2*r}, v{9+2*r}, v6\n"
    o += """
    v_cvt_pk_bf16_f32 v16, v8, v9
    v_cvt_pk_bf16_f32 v17, v10, v11
    v_cvt_pk_bf16_f32 v18, v12, v13
    v_cvt_pk_bf16_f32 v19, v14, v15
    v_permlane32_swap_b32 v16, v18
    v_permlane32_swap_b32 v17, v19
    v_permlane16_swap_b32 v16, v18
    v_permlane16_swap_b32 v17, v19
    buffer_store_dwordx4 v[16:19], v3, s[4:7], s15 offen
    """
    if cfg.prof:
        o += """
    s_waitcnt vmcnt(0)
    s_memrealtime s[22:23]
    s_waitcnt lgkmcnt(0)
    s_lshl_b32 s16, s13, 3
    s_add_u32 s16, s16, 0x40000
    v_mov_b32 v1, 0
    v_mov_b32 v20, s20
    v_mov_b32 v21, s22
    s_mov_b64 exec, 1
    buffer_store_dwordx2 v[20:21], v1, s[8:11], s16 offen
    """
    o += "k2_end:\ns_endpgm\n"
    st = Stream()
    st.emit(o)
    return pad_hazards(st.out)[0]


def fmt(seq):
    return "\n".join((x.t if x.k == "label" else "    " + x.t) for x in seq) + "\n"


HEAD = """; Fused MHA block for x(16,112,512) k/v(16,32,512,128) wq(512,4096) wo(4096,512), bf16.
"""


def gen(cfg, verbose=False):
    o = Asm()
    o(HEAD + header(["; @launch kernel=mha_main_kernel grid=(256,1,1) block=(256,1,1) lds=163840",
                     "; @launch kernel=mha_reduce_kernel grid=(448,1,1) block=(256,1,1) lds=0"]))
    o(kstart("mha_main_kernel"))
    st = Stream()
    st.emit(setup_early(cfg))
    o(fmt(pad_hazards(st.out)[0]))
    s2, i2 = build_stream(2, cfg, "w2")
    s1, i1 = build_stream(1, cfg, "w1")
    if verbose:
        print(i2, i1, file=sys.stderr)
    o(fmt(s2))
    o(".p2align 6\nk1_w3:")
    o(fmt(s1))
    o("k1_end:\n    s_endpgm\nk1_codeend:")
    o(kstart("mha_reduce_kernel"))
    o(fmt(reduce_kernel(cfg)))
    o(RODATA)
    fp = "  .amdhsa_float_denorm_mode_32 3\n"
    o(kdesc("mha_main_kernel", vgpr=512, accum=256, extra=fp))
    o(".p2align 6")
    o(kdesc("mha_reduce_kernel", vgpr=80, sgpr=32, accum=80, extra=fp))
    return o.text()


if __name__ == "__main__":
    out = sys.argv[1] if len(sys.argv) > 1 else "standalone__mha_block_cached__near_ridge.s"
    kw = {}
    for x in sys.argv[2:]:
        k, val = x.split("=")
        kw[k] = eval(val)
    open(out, "w").write(gen(Cfg(**kw), True))
```
